```python
import torch

def _softmax(x, axis=-1):
    return torch.softmax(x, dim=axis)
def _gelu(x):
    return torch.nn.functional.gelu(x, approximate="tanh")
def _silu(x):
    return torch.nn.functional.silu(x)
def _sigmoid(x):
    return torch.sigmoid(x)
def _layernorm(x, axis=-1, eps=1e-5):
    m = x.mean(dim=axis, keepdim=True)
    v = x.var(dim=axis, keepdim=True, unbiased=False)
    return (x - m) / torch.sqrt(v + eps)
def _scatter_add(tgt, idx, src, axis=0):
    return tgt.clone().index_add_(axis, idx, src)
def _segment_sum(src, seg, n):
    out = torch.zeros((n,) + src.shape[1:], dtype=src.dtype)
    return out.index_add_(0, seg, src)
def _pad(x, pw):
    flat = tuple(v for pair in reversed(pw) for v in pair)
    return torch.nn.functional.pad(x, flat)

kernel_name = 'sequential_preLN__ssm_conv_h3__dense_activation_silu__prompt'

def setup_inputs():

    _w = (lambda a: (lambda t: t.to(torch.bfloat16) if t.is_floating_point() else t)(torch.as_tensor(a)))
    def _A_setup():
        B, S, D = 1, 2048, 512
        ks = 4
        return {
            "q": _w((lambda *s: torch.randn(*s, dtype=torch.bfloat16) * 0.05)(B, S, D)),
            "k": _w((lambda *s: torch.randn(*s, dtype=torch.bfloat16) * 0.2)(B, S, D)),
            "v": _w((lambda *s: torch.randn(*s, dtype=torch.bfloat16) * 0.2)(B, S, D)),
            "shift_k": _w((lambda *s: torch.randn(*s, dtype=torch.bfloat16) * 0.2)(D, ks) * 0.5),
            "ssm_k": _w((lambda *s: torch.randn(*s, dtype=torch.bfloat16) * 0.8)(D, S) * (1.0 / S ** 0.5)),
            "ssm_D": _w((lambda *s: torch.randn(*s, dtype=torch.bfloat16) * 0.2)(D)),
        }
    _A_in = _A_setup()

    def _B_setup():
        B, S, D, F = 1, 2048, 512, 1376
        return {
            "x": _w((lambda *s: torch.randn(*s, dtype=torch.bfloat16) * 0.05)(B, S, D)),
            "w1": _w((lambda *s: torch.randn(*s, dtype=torch.bfloat16) * 0.8)(D, F) * (D ** -0.5)),
            "w2": _w((lambda *s: torch.randn(*s, dtype=torch.bfloat16) * 0.1)(F, D) * (F ** -0.5)),
        }
    _B_in = _B_setup()

    return {
        "A_q": _A_in["q"],
        "A_k": _A_in["k"],
        "A_v": _A_in["v"],
        "A_shift_k": _A_in["shift_k"],
        "A_ssm_k": _A_in["ssm_k"],
        "A_ssm_D": _A_in["ssm_D"],
        "B_x": _B_in["x"],
        "B_w1": _B_in["w1"],
        "B_w2": _B_in["w2"],
    }

def reference(A_q, A_k, A_v, A_shift_k, A_ssm_k, A_ssm_D, B_x, B_w1, B_w2):
    def _A_ref(q, k, v, shift_k, ssm_k, ssm_D):
        B, S, D = q.shape
        ks = shift_k.shape[-1]
        k_pad = _pad(k, ((0, 0), (ks - 1, 0), (0, 0)))
        k_shift = torch.zeros_like(k)
        for t in range(ks):
            k_shift = k_shift + k_pad[:, t:t + S, :] * shift_k[:, ks - 1 - t][None, None, :]
        kv = k_shift * v
        L = 2 * S
        kv_pad = _pad(kv, ((0, 0), (0, S), (0, 0)))
        kf_pad = _pad(ssm_k, ((0, 0), (0, S)))
        kv_f = (lambda x, axes=(-2,-1): torch.fft.rfft2(x.float(), dim=axes))(kv_pad[:, None, :, :], axes=(1, 2))
        kf_f = (lambda x, axes=(-2,-1): torch.fft.rfft2(x.float(), dim=axes))(kf_pad[:, None, :], axes=(1, 2))
        kf_f = (lambda x, *d: x.permute(*d))(kf_f, 1, 2, 0)
        y_f = kv_f * kf_f[None, :, :, :]
        y = (lambda x, s, axes=(-2,-1): torch.fft.irfft2(x, s=s, dim=axes).to(torch.bfloat16))(y_f, (1, L), axes=(1, 2))[:, 0, :S, :]
        y = y + kv * ssm_D[None, None, :]
        return q * y

    def _B_ref(x, w1, w2):
        h = torch.einsum("bsd,df->bsf", x, w1)
        h = _silu(h)
        out = torch.einsum("bsf,fd->bsd", h, w2)
        return out

    x = A_q
    h = x + _A_ref(_layernorm(x, axis=-1), A_k, A_v, A_shift_k, A_ssm_k, A_ssm_D)
    h2 = h + _B_ref(_layernorm(h, axis=-1), B_w1, B_w2)
    return h2
```

```python
NAME = "sequential_preLN__ssm_conv_h3__dense_activation_silu__prompt"

HEADER = open("cdna_kernels/%s.s.ref" % NAME).read().split("; Override launch geometry")[0]

class K:
    def __init__(self, name, grid, block, lds, vgpr=256, agpr=0, sgpr=102):
        self.name, self.grid, self.block, self.lds = name, grid, block, lds
        self.vgpr, self.agpr, self.sgpr = vgpr, agpr, sgpr
        self.lines = []
        self.nlab = 0
    def __call__(self, s):
        for l in s.strip("\n").split("\n"):
            l = l.strip()
            if l:
                self.lines.append(("" if l.endswith(":") else "  ") + l)
    def label(self, base="L"):
        self.nlab += 1
        return f"{base}_{self.name}_{self.nlab}"
    def srd(self, d, base, nrec, add=None):
        if add is None:
            self(f"s_mov_b32 s{d}, s{base}\ns_mov_b32 s{d+1}, s{base+1}")
        else:
            self(f"s_add_u32 s{d}, s{base}, {add}\ns_addc_u32 s{d+1}, s{base+1}, 0")
        self(f"s_mov_b32 s{d+2}, {nrec}\ns_mov_b32 s{d+3}, 0x00020000")
    def text(self):
        acc_off = (self.vgpr + 3) // 4 * 4
        nfv = acc_off + self.agpr if self.agpr else self.vgpr
        return (f".globl {self.name}\n.p2align 8\n.type {self.name},@function\n{self.name}:\n"
                + "\n".join(self.lines) + "\n")
    def desc(self):
        acc_off = (self.vgpr + 3) // 4 * 4
        nfv = acc_off + self.agpr if self.agpr else self.vgpr
        return (f".p2align 6\n.amdhsa_kernel {self.name}\n  .amdhsa_next_free_vgpr {nfv}\n  .amdhsa_next_free_sgpr {self.sgpr}\n"
                f"  .amdhsa_accum_offset {acc_off}\n  .amdhsa_group_segment_fixed_size 0\n  .amdhsa_kernarg_size 96\n"
                f"  .amdhsa_user_sgpr_count 2\n  .amdhsa_user_sgpr_kernarg_segment_ptr 1\n  .amdhsa_system_sgpr_workgroup_id_x 1\n"
                f"  .amdhsa_float_denorm_mode_32 3\n  .amdhsa_float_denorm_mode_16_64 3\n"
                f".end_amdhsa_kernel\n")

def emit(kernels, launches, path):
    s = HEADER
    for k in launches:
        s += f"; @launch kernel={k.name} grid=({k.grid},1,1) block=({k.block},1,1) lds={k.lds}\n"
    s += '.amdgcn_target "amdgcn-amd-amdhsa--gfx950"\n.text\n'
    for k in kernels:
        s += k.text()
    s += '.section .rodata,"a"\n'
    for k in kernels:
        s += k.desc()
    open(path, "w").write(s)
```

```python
import sys; sys.path.insert(0, "dev")
from asmlib import *

UT, XT, ST1, HT, H1F = 0x000000, 0x200000, 0x400000, 0x500000, 0x800000
STAMP = 0x1000000
WSZ = 0x10000000
PROF = "--prof" in sys.argv

def stamp(k, i):
    if PROF: k(f"s_memrealtime s[{80+2*i}:{81+2*i}]")
def finish(k, n, wsptr, kidx):
    if PROF:
        k("s_waitcnt vmcnt(0) lgkmcnt(0)")
        stamp(k, n); n += 1
        k("s_waitcnt lgkmcnt(0)")
        k.srd(72, wsptr, WSZ)
        k(f"s_lshl_b32 s3, s2, 6\ns_add_u32 s3, s3, {STAMP + kidx*0x4000}\nv_mov_b32 v1, 0")
        k("s_mov_b64 exec, -1\nv_cmp_eq_u32 vcc, 0, v0\ns_and_saveexec_b64 s[76:77], vcc")
        lab = k.label()
        k(f"s_cbranch_execz {lab}")
        for i in range(n):
            k(f"v_mov_b32 v2, s{80+2*i}\nv_mov_b32 v3, s{81+2*i}\nbuffer_store_dwordx2 v[2:3], v1, s[72:75], s3 offen offset:{8*i}\ns_nop 1")
        k(f"{lab}:")
    k(f"L_end_{k.name}:\ns_endpgm")

def dma(k, ldsaddr_expr, voff, srd, soff, imm=0, flags=""):
    k(f"{ldsaddr_expr}\ns_nop 0\nbuffer_load_dwordx4 {voff}, s[{srd}:{srd+3}], {soff} offen" + (f" offset:{imm}" if imm else "") + f" {flags} lds")

def kernel_pre():
    k = K("pre_kernel", 256, 512, 25600, vgpr=64)
    k(f"s_cmp_ge_u32 s2, 256\ns_cbranch_scc1 L_end_{k.name}")
    stamp(k, 0)
    k("""
    s_load_dwordx4 s[28:31], s[0:1], 0
    s_load_dwordx4 s[32:35], s[0:1], 16
    s_load_dwordx2 s[36:37], s[0:1], 88
    v_lshrrev_b32 v1, 6, v0
    v_and_b32 v2, 63, v0
    s_and_b32 s40, s2, 7
    v_readfirstlane_b32 s42, v1
    s_lshr_b32 s41, s2, 3
    """)
    k("""
    v_lshrrev_b32 v3, 3, v2
    v_and_b32 v4, 7, v2
    v_and_b32 v5, 2, v3
    v_xor_b32 v4, v4, v5
    s_and_b32 s43, s42, 1
    s_lshl_b32 s43, s43, 2
    v_xor_b32 v6, 4, v4
    v_xor_b32 v4, s43, v4
    v_lshlrev_b32 v3, 10, v3
    v_lshl_add_u32 v4, v4, 4, v3
    v_lshl_add_u32 v6, v6, 4, v3
    """)
    k("""
    s_lshl_b32 s44, s41, 16
    s_lshl_b32 s45, s40, 7
    s_add_u32 s44, s44, s45
    s_lshl_b32 s45, s42, 13
    s_add_u32 s45, s45, s44
    s_sub_u32 s46, s44, 8192
    s_cmp_eq_u32 s41, 0
    s_cselect_b32 s46, 0x40000000, s46
    s_lshl_b32 s47, s2, 13
    s_lshl_b32 s48, s42, 10
    s_add_u32 s47, s47, s48
    v_lshlrev_b32 v7, 4, v2
    """)
    k("""
    s_and_b32 s49, s42, 3
    s_lshl_b32 s50, s49, 4
    s_lshl_b32 s51, s40, 6
    s_add_u32 s50, s50, s51
    v_and_b32 v8, 15, v2
    v_add_u32 v8, s50, v8
    v_lshlrev_b32 v9, 3, v8
    s_waitcnt lgkmcnt(0)
    """)
    k.srd(8, 28, 0x200000); k.srd(12, 30, 0x200000); k.srd(16, 32, 0x200000); k.srd(20, 34, 4096); k.srd(24, 36, WSZ)
    dma(k, "s_add_u32 m0, s48, 1024", "v4", 12, "s45")
    dma(k, "s_add_u32 m0, s48, 9216", "v4", 16, "s45")
    k("buffer_load_dwordx4 v[12:15], v7, s[8:11], s47 offen")
    dma(k, "s_add_u32 m0, s48, 17408", "v4", 8, "s45")
    k("buffer_load_dwordx2 v[10:11], v9, s[20:23], 0 offen")
    lab = k.label()
    k(f"s_cmp_lg_u32 s42, 0\ns_cbranch_scc1 {lab}")
    dma(k, "s_mov_b32 m0, 0", "v6", 12, "s46")
    k(f"{lab}:")
    k("""
    v_lshrrev_b32 v16, 4, v2
    v_bfe_u32 v17, v2, 2, 2
    v_and_b32 v18, 3, v2
    s_lshr_b32 s52, s42, 2
    s_lshl_b32 s52, s52, 2
    v_add_u32 v19, s52, v16
    v_lshl_add_u32 v20, v19, 3, v17
    v_lshlrev_b32 v20, 7, v20
    v_lshrrev_b32 v21, 1, v17
    v_and_b32 v22, 1, v16
    v_lshl_or_b32 v21, v22, 1, v21
    v_xor_b32 v21, s49, v21
    v_lshl_add_u32 v20, v21, 5, v20
    v_lshl_add_u32 v20, v18, 3, v20
    v_xor_b32 v21, 64, v20
    """)
    k("""
    s_lshl_b32 s53, s41, 3
    v_add_u32 v19, s53, v19
    v_sub_u32 v22, 255, v19
    v_lshlrev_b32 v8, 12, v8
    v_lshl_add_u32 v22, v22, 4, v8
    v_lshl_add_u32 v23, v19, 4, v8
    """)
    k("s_waitcnt vmcnt(0)")
    stamp(k, 1)
    k("s_barrier")
    k("""
    ds_read_b64_tr_b16 v[24:25], v21 offset:512
    ds_read_b64_tr_b16 v[26:27], v20 offset:1024
    ds_read_b64_tr_b16 v[28:29], v20 offset:1536
    ds_read_b64_tr_b16 v[30:31], v20 offset:9216
    ds_read_b64_tr_b16 v[32:33], v20 offset:9728
    ds_read_b64_tr_b16 v[36:37], v20 offset:17408
    ds_read_b64_tr_b16 v[38:39], v20 offset:17920
    """)
    k("""
    s_mov_b32 s54, 0x3f803f80
    v_mov_b32 v60, 0
    v_mov_b32 v61, 0
    s_mov_b32 s55, 0xffff0000
    v_dot2_f32_bf16 v60, v12, s54, v60
    v_dot2_f32_bf16 v61, v12, v12, v61
    v_dot2_f32_bf16 v60, v13, s54, v60
    v_dot2_f32_bf16 v61, v13, v13, v61
    v_dot2_f32_bf16 v60, v14, s54, v60
    v_dot2_f32_bf16 v61, v14, v14, v61
    v_dot2_f32_bf16 v60, v15, s54, v60
    v_dot2_f32_bf16 v61, v15, v15, v61
    v_lshlrev_b32 v40, 16, v10
    v_and_b32 v41, s55, v10
    v_lshlrev_b32 v42, 16, v11
    v_and_b32 v43, s55, v11
    """)
    for mod in ("quad_perm:[1,0,3,2] row_mask:0xf bank_mask:0xf", "quad_perm:[2,3,0,1] row_mask:0xf bank_mask:0xf",
                "row_half_mirror row_mask:0xf bank_mask:0xf", "row_mirror row_mask:0xf bank_mask:0xf",
                "row_bcast:15 row_mask:0xa bank_mask:0xf", "row_bcast:31 row_mask:0xc bank_mask:0xf"):
        k(f"v_add_f32_dpp v60, v60, v60 {mod}\nv_add_f32_dpp v61, v61, v61 {mod}\ns_nop 0")
    k("""
    v_mul_f32 v60, 0x3b000000, v60
    v_mul_f32 v61, 0x3b000000, v61
    v_fma_f32 v61, -v60, v60, v61
    v_max_f32 v61, 0, v61
    v_add_f32 v61, 0x3727c5ac, v61
    v_rsq_f32 v62, v61
    s_lshr_b32 s56, s47, 7
    v_mul_f32 v63, -v60, v62
    """)
    k(f"s_add_u32 s56, s56, {ST1}\nv_mov_b32 v1, 0\ns_mov_b64 exec, 0x8000000000000000" .replace("s_mov_b64 exec, 0x8000000000000000", "s_mov_b32 exec_lo, 0\ns_mov_b32 exec_hi, 0x80000000"))
    k("buffer_store_dwordx2 v[62:63], v1, s[24:27], s56 offen\ns_mov_b64 exec, -1")
    k("s_waitcnt lgkmcnt(0)")
    k(f"s_mov_b32 s57, {XT}\nbuffer_store_dwordx4 v[36:39], v23, s[24:27], s57 offen")
    kr = {}
    reg = 44
    for row in range(-3, 8):
        dw = 24 + (row + 4) // 2
        if (row + 4) % 2 == 0: k(f"v_lshlrev_b32 v{reg}, 16, v{dw}")
        else: k(f"v_and_b32 v{reg}, s55, v{dw}")
        kr[row] = reg; reg += 1
    outr = [12, 13, 14, 15, 16, 17, 18, 19]
    vr = [24, 25, 26, 27, 28, 29, 55, 56]
    for i in range(8):
        dw = 30 + i // 2
        if i % 2 == 0: k(f"v_lshlrev_b32 v{vr[i]}, 16, v{dw}")
        else: k(f"v_and_b32 v{vr[i]}, s55, v{dw}")
    for i in range(8): k(f"v_mul_f32 v{outr[i]}, v{kr[i-3]}, v43")
    for i in range(8): k(f"v_fmac_f32 v{outr[i]}, v{kr[i-2]}, v42")
    for i in range(8): k(f"v_fmac_f32 v{outr[i]}, v{kr[i-1]}, v41")
    for i in range(8): k(f"v_fmac_f32 v{outr[i]}, v{kr[i]}, v40")
    for i in range(8): k(f"v_mul_f32 v{outr[i]}, v{outr[i]}, v{vr[i]}")
    for j in range(4): k(f"v_cvt_pk_bf16_f32 v{32+j}, v{outr[7-2*j]}, v{outr[6-2*j]}")
    k("buffer_store_dwordx4 v[32:35], v22, s[24:27], 0 offen")
    finish(k, 2, 36, 0)
    return k

KCS, UCB, UCS, CHS = 4160, 16640, 4576, 25792
XCH = 2 * CHS
def kernel_conv():
    k = K("conv_kernel", 256, 256, XCH + 16384, vgpr=232)
    k(f"s_cmp_ge_u32 s2, 256\ns_cbranch_scc1 L_end_{k.name}")
    stamp(k, 0)
    k("""
    s_load_dwordx4 s[28:31], s[0:1], 32
    s_load_dwordx2 s[36:37], s[0:1], 88
    v_lshrrev_b32 v1, 6, v0
    v_and_b32 v2, 63, v0
    s_and_b32 s40, s2, 7
    v_readfirstlane_b32 s42, v1
    s_lshr_b32 s41, s2, 3
    s_lshl_b32 s43, s40, 6
    s_lshl_b32 s41, s41, 1
    s_add_u32 s43, s43, s41
    s_lshr_b32 s44, s42, 1
    s_and_b32 s45, s42, 1
    s_add_u32 s46, s43, s44
    s_lshl_b32 s47, s46, 12
    """)
    k(f"s_mul_i32 s48, s44, {CHS}")
    k("""
    v_lshlrev_b32 v3, 4, v2
    s_lshl_b32 s49, s45, 2
    s_add_u32 s49, s49, 10
    v_add_u32 v4, s49, v3
    v_add_u32 v5, 2, v4
    s_lshl_b32 s50, s45, 3
    s_sub_u32 s50, 8, s50
    v_add_u32 v6, s50, v3
    s_lshl_b32 s51, s43, 1
    s_waitcnt lgkmcnt(0)
    s_add_u32 s30, s30, s51
    s_addc_u32 s31, s31, 0
    s_load_dword s52, s[30:31], 0
    """)
    k.srd(8, 28, 4096, add="s47")
    k.srd(12, 36, 4096, add="s47")
    k.srd(24, 36, WSZ)
    k(f"s_mul_i32 s53, s45, {UCS}\ns_add_u32 s53, s53, s48\ns_add_u32 s53, s53, {UCB}")
    k(f"s_mul_i32 s54, s45, {2*KCS}\ns_add_u32 s54, s54, s48")
    for i in range(4): dma(k, "s_mov_b32 m0, s53", "v6", 12, 0, imm=1024*i)
    for i in range(4): dma(k, f"s_add_u32 m0, s54, {KCS+64}", "v5", 8, 0, imm=1024*i)
    for i in range(4): dma(k, "s_add_u32 m0, s54, 64", "v4", 8, 0, imm=1024*i)
    k("""
    v_lshrrev_b32 v7, 5, v2
    v_and_b32 v8, 31, v2
    s_lshl_b32 s55, s45, 1
    s_sub_u32 s55, s55, 27
    v_add3_u32 v9, v7, v8, s55
    v_lshlrev_b32 v10, 1, v9
    v_cmp_gt_i32 vcc, 0, v9
    v_mov_b32 v11, 0x7ffffff0
    s_nop 0
    v_cndmask_b32 v10, v10, v11, vcc
    buffer_load_ushort v12, v10, s[8:11], 0 offen
    """)
    k(f"v_mul_u32_u24 v7, {KCS}, v7\nv_lshl_add_u32 v7, v8, 1, v7\nv_add_u32 v7, s54, v7")
    k("""
    v_and_b32 v13, 15, v2
    v_lshrrev_b32 v14, 4, v2
    v_and_b32 v15, 1, v13
    v_lshrrev_b32 v8, 1, v13
    v_lshlrev_b32 v9, 3, v14
    v_lshl_add_u32 v9, v15, 2, v9
    v_lshl_add_u32 v9, v8, 5, v9
    s_lshl_b32 s56, s45, 10
    v_add_u32 v9, s56, v9
    v_lshlrev_b32 v10, 1, v9
    v_lshlrev_b32 v11, 3, v9
    """)
    k(f"s_add_u32 s57, s47, {XT}\ns_mov_b32 s58, {ST1}\ns_mov_b32 s59, {ST1+4096}\ns_add_u32 s60, s47, {HT}")
    for i in range(4): k(f"buffer_load_dwordx2 v[{176+2*i}:{177+2*i}], v10, s[24:27], s57 offen offset:{512*i}")
    for i in range(4):
        for hh in range(2):
            k(f"buffer_load_dwordx4 v[{184+8*i+4*hh}:{187+8*i+4*hh}], v11, s[24:27], s{58+i//2} offen offset:{2048*(i%2)+16*hh}")
    k("v_mov_b32 v16, 0\nv_mov_b32 v17, 0\nv_mov_b32 v18, 0\nv_mov_b32 v19, 0\nv_add_u32 v20, s53, v3")
    k("s_mov_b32 exec_lo, 0x0fffffff\ns_mov_b32 exec_hi, 0\nds_write_b128 v20, v[16:19] offset:4096\ns_mov_b64 exec, -1")
    k(f"""
    v_and_b32 v21, 3, v13
    v_lshrrev_b32 v22, 2, v13
    v_add_u32 v22, v22, v14
    v_mul_u32_u24 v21, {KCS}, v21
    v_lshl_add_u32 v21, v22, 4, v21
    s_lshl_b32 s61, s45, 8
    s_add_u32 s61, s61, s48
    v_add_u32 v224, s61, v21
    v_mul_u32_u24 v21, {UCS}, v15
    v_lshl_add_u32 v21, v14, 4, v21
    v_lshlrev_b32 v22, 6, v8
    v_sub_u32 v21, v21, v22
    s_add_u32 s61, s61, {UCB+448}
    v_add_u32 v225, s61, v21
    """)
    k(f"s_add_u32 s62, s48, {UCB+UCS+4088-1536}\nv_sub_u32 v226, s62, v10")
    k(f"s_lshl_b32 s63, s42, 12\ns_xor_b32 s66, s63, 4096\ns_add_u32 s63, s63, {XCH}\ns_add_u32 s66, s66, {XCH}\nv_add_u32 v227, s63, v3\nv_add_u32 v228, s66, v3")
    k("s_waitcnt vmcnt(12)\nds_write_b16 v7, v12")
    k("s_waitcnt lgkmcnt(0)")
    stamp(k, 1)
    k("s_barrier")
    ACC = 16
    A = [48, 112]; B = [80, 144]
    def rdA(st, p): return f"ds_read_b128 v[{A[st%2]+4*p}:{A[st%2]+4*p+3}], v224 offset:{64*st+512*p}"
    def rdB(st, d): return f"ds_read_b128 v[{B[st%2]+4*d}:{B[st%2]+4*d+3}], v225 offset:{3584+64*st-512*d}"
    def mf(st, p, d, first):
        ta = p + d
        c = "0" if first else f"v[{ACC+4*ta}:{ACC+4*ta+3}]"
        return f"v_mfma_f32_16x16x32_bf16 v[{ACC+4*ta}:{ACC+4*ta+3}], v[{A[st%2]+4*p}:{A[st%2]+4*p+3}], v[{B[st%2]+4*d}:{B[st%2]+4*d+3}], {c}"
    order = sorted([(p, d) for p in range(8) for d in range(8) if p + d <= 7], key=lambda x: (max(x), x))
    for j in range(8): k(rdA(0, j)); k(rdB(0, j))
    seen = set()
    for st in range(4):
        nxt = []
        if st < 3:
            for j in range(8): nxt += [rdA(st+1, j), rdB(st+1, j)]
        else:
            for i in range(4): nxt += [f"ds_read_b64 v[{216+2*i}:{217+2*i}], v226 offset:{512*(3-i)}"]
        lvl = -1
        for idx, (p, d) in enumerate(order):
            if st == 0 and max(p, d) > lvl:
                lvl = max(p, d); k(f"s_waitcnt lgkmcnt({min(15, 14 - 2*lvl)})")
            k(mf(st, p, d, (p + d) not in seen)); seen.add(p + d)
            if st == 0:
                if lvl == 7 or idx >= 20:
                    pass
            if st > 0 and nxt and idx % 2 == 0: k(nxt.pop(0))
        if st == 0:
            for r in nxt: k(r)
            nxt = []
        for r in nxt: k(r)
        k("s_waitcnt lgkmcnt(0)")
    stamp(k, 2)
    l1, l2 = k.label(), k.label()
    k("s_nop 7")
    k(f"s_cmp_eq_u32 s45, 0\ns_cbranch_scc0 {l1}")
    for i in range(4): k(f"ds_write_b128 v227, v[{ACC+16+4*i}:{ACC+19+4*i}] offset:{1024*i}")
    k(f"s_branch {l2}\n{l1}:")
    for i in range(4): k(f"ds_write_b128 v227, v[{ACC+4*i}:{ACC+3+4*i}] offset:{1024*i}")
    k("s_nop 1")
    for r in range(16): k(f"v_mov_b32 v{ACC+r}, v{ACC+16+r}")
    k(f"{l2}:")
    k("s_lshl_b32 s64, s52, 16\ns_and_b32 s65, s52, 0xffff0000\ns_cmp_eq_u32 s44, 0\ns_cselect_b32 s52, s64, s65\ns_mov_b32 s55, 0xffff0000")
    k("s_waitcnt vmcnt(0) lgkmcnt(0)\ns_barrier")
    for i in range(4): k(f"ds_read_b128 v[{48+4*i}:{51+4*i}], v228 offset:{1024*i}")
    for i in range(4):
        for e in range(4):
            xs = 176 + 2*i + e//2
            k(f"v_lshlrev_b32 v{64+4*i+e}, 16, v{xs}" if e % 2 == 0 else f"v_and_b32 v{64+4*i+e}, s55, v{xs}")
            us = 216 + 2*i + (3-e)//2
            k(f"v_lshlrev_b32 v{96+4*i+e}, 16, v{us}" if (3-e) % 2 == 0 else f"v_and_b32 v{96+4*i+e}, s55, v{us}")
    for i in range(4):
        for e in range(4):
            k(f"v_fma_f32 v{80+4*i+e}, v{64+4*i+e}, v{184+8*i+2*e}, v{185+8*i+2*e}")
            k(f"v_fmac_f32 v{ACC+4*i+e}, s52, v{96+4*i+e}")
    k("s_waitcnt lgkmcnt(0)")
    for i in range(4):
        for e in range(4): k(f"v_add_f32 v{ACC+4*i+e}, v{ACC+4*i+e}, v{48+4*i+e}")
        for e in range(4): k(f"v_fmac_f32 v{64+4*i+e}, v{80+4*i+e}, v{ACC+4*i+e}")
        k(f"v_cvt_pk_bf16_f32 v{112+2*i}, v{64+4*i}, v{65+4*i}\nv_cvt_pk_bf16_f32 v{113+2*i}, v{66+4*i}, v{67+4*i}")
        k(f"buffer_store_dwordx2 v[{112+2*i}:{113+2*i}], v10, s[24:27], s60 offen offset:{512*i}")
    finish(k, 3, 36, 1)
    return k

def wgmap(k):
    k("""
    v_lshrrev_b32 v1, 6, v0
    v_and_b32 v2, 63, v0
    s_and_b32 s40, s2, 7
    v_readfirstlane_b32 s42, v1
    s_lshr_b32 s41, s2, 3
    s_lshl_b32 s43, s40, 2
    s_lshr_b32 s44, s41, 3
    s_add_u32 s43, s43, s44
    s_and_b32 s44, s41, 7
    """)

def kernel_g1():
    k = K("g1_kernel", 256, 256, 163840, vgpr=200)
    k(f"s_cmp_ge_u32 s2, 256\ns_cbranch_scc1 L_end_{k.name}")
    stamp(k, 0)
    k("s_load_dwordx2 s[28:29], s[0:1], 56\ns_load_dwordx2 s[36:37], s[0:1], 88")
    wgmap(k)
    k("s_mul_i32 s45, s44, 85\ns_lshr_b32 s45, s45, 3\ns_mul_i32 s46, s42, 3\ns_add_u32 s45, s45, s46")
    k("s_lshl_b32 s46, s45, 5")
    for j in range(3):
        k(f"v_add_u32 v7, {64*j}, v2\ns_mov_b32 s47, 43691\nv_mul_lo_u32 v8, v7, s47\nv_lshrrev_b32 v8, 18, v8\nv_mul_u32_u24 v9, 6, v8\nv_sub_u32 v9, v7, v9\nv_mul_u32_u24 v8, 2752, v8\nv_lshl_add_u32 v{4+j}, v9, 4, v8")
    k("""
    v_lshrrev_b32 v7, 3, v2
    v_and_b32 v8, 7, v2
    v_and_b32 v9, 6, v7
    v_xor_b32 v8, v8, v9
    v_lshlrev_b32 v7, 12, v7
    v_lshl_add_u32 v3, v8, 4, v7
    """)
    k(f"s_lshl_b32 s48, s43, 7\ns_lshl_b32 s49, s42, 15\ns_add_u32 s48, s48, s49\ns_add_u32 s48, s48, {HT}")
    k("s_lshl_b32 s49, s42, 10")
    k("s_mul_i32 s50, s42, 24576\ns_add_u32 s50, s50, 65536")
    k("s_waitcnt lgkmcnt(0)")
    k.srd(8, 28, 512*1376*2); k.srd(24, 36, WSZ)
    def issue(ks):
        k(f"s_add_u32 s51, s48, {ks*4*8*4096}")
        dma(k, f"s_add_u32 m0, s49, {ks*4096}", "v3", 24, "s51")
        k(f"s_add_u32 s51, s46, {ks*32*2752}")
        for j in range(3):
            dma(k, f"s_add_u32 m0, s50, {(ks%8)*3072 + j*1024}", f"v{4+j}", 8, "s51")
    for ks in range(8): issue(ks)
    k("""
    v_lshrrev_b32 v7, 4, v2
    v_bfe_u32 v8, v2, 2, 2
    v_and_b32 v9, 3, v2
    v_lshl_add_u32 v10, v7, 2, v8
    v_mul_u32_u24 v11, 96, v10
    v_lshl_add_u32 v11, v9, 3, v11
    v_add_u32 v11, s50, v11
    v_bfe_u32 v12, v10, 1, 2
    v_xor_b32 v12, s42, v12
    v_lshlrev_b32 v13, 7, v10
    v_lshl_add_u32 v13, v9, 3, v13
    v_lshl_add_u32 v12, v12, 5, v13
    v_xor_b32 v13, 32, v12
    v_xor_b32 v14, 64, v12
    v_xor_b32 v15, 96, v12
    """)
    ONES = 16; S_, Q_ = 20, 21
    for r in range(4): k(f"v_mov_b32 v{ONES+r}, 0x3f803f80")
    k(f"v_mov_b32 v{S_}, 0\nv_mov_b32 v{Q_}, 0")
    ACC = 24; CS = 72; AF = 88; BF = 112
    acc = lambda j, i: ACC + (j*4 + i)*4
    outstanding = 32
    for kp in range(8):
        k(f"s_waitcnt vmcnt({outstanding - 8})"); outstanding -= 8
        if kp == 0: stamp(k, 1)
        k("s_barrier")
        for kk in range(2):
            ks = 2*kp + kk
            for j in range(3):
                for hh in range(2):
                    r = AF + (kk*3 + j)*4 + 2*hh
                    k(f"ds_read_b64_tr_b16 v[{r}:{r+1}], v11 offset:{(ks%8)*3072 + j*32 + hh*1536}")
            for i in range(4):
                for hh in range(2):
                    r = BF + (kk*4 + i)*4 + 2*hh
                    k(f"ds_read_b64_tr_b16 v[{r}:{r+1}], v{12+i} offset:{ks*4096 + hh*2048}")
        k("s_waitcnt lgkmcnt(0)")
        if kp < 4:
            issue(2*kp + 8); issue(2*kp + 9); outstanding += 8
        for kk in range(2):
            first = (kp == 0 and kk == 0)
            for j in range(3):
                a = AF + (kk*3 + j)*4
                for i in range(4):
                    b = BF + (kk*4 + i)*4
                    c = "0" if first else f"v[{acc(j,i)}:{acc(j,i)+3}]"
                    k(f"v_mfma_f32_16x16x32_bf16 v[{acc(j,i)}:{acc(j,i)+3}], v[{a}:{a+3}], v[{b}:{b+3}], {c}")
                c = "0" if first else f"v[{CS+4*j}:{CS+4*j+3}]"
                k(f"v_mfma_f32_16x16x32_bf16 v[{CS+4*j}:{CS+4*j+3}], v[{a}:{a+3}], v[{ONES}:{ONES+3}], {c}")
            b = BF + kk*16
            for r in range(4):
                k(f"v_dot2_f32_bf16 v{S_}, v{b+r}, v{ONES}, v{S_}\nv_dot2_f32_bf16 v{Q_}, v{b+r}, v{b+r}, v{Q_}")
    stamp(k, 2)
    k("""
    v_and_b32 v8, 15, v2
    v_lshl_add_u32 v9, v8, 2, v7
    v_lshlrev_b32 v9, 3, v9
    v_add_u32 v9, s50, v9
    """)
    k(f"ds_write_b64 v9, v[{S_}:{Q_}]\ns_waitcnt lgkmcnt(0)\ns_barrier")
    for i in range(4):
        k(f"s_xor_b32 s52, s42, {i}\ns_mul_i32 s52, s52, 24576\ns_add_u32 s52, s52, 65536\nv_lshlrev_b32 v10, 5, v8\nv_add_u32 v10, s52, v10")
        k(f"ds_read_b128 v[{BF+8*i}:{BF+8*i+3}], v10\nds_read_b128 v[{BF+8*i+4}:{BF+8*i+7}], v10 offset:16")
    k("s_waitcnt lgkmcnt(0)")
    NM, RS, RZ = 144, 148, 152
    for i in range(4):
        b = BF + 8*i
        k(f"""
        v_add_f32 v{b}, v{b}, v{b+2}
        v_add_f32 v{b+1}, v{b+1}, v{b+3}
        v_add_f32 v{b+4}, v{b+4}, v{b+6}
        v_add_f32 v{b+5}, v{b+5}, v{b+7}
        v_add_f32 v{b}, v{b}, v{b+4}
        v_add_f32 v{b+1}, v{b+1}, v{b+5}
        v_mul_f32 v{NM+i}, 0xbb000000, v{b}
        v_mul_f32 v{b+1}, 0x3b000000, v{b+1}
        v_fma_f32 v{b+1}, -v{NM+i}, v{NM+i}, v{b+1}
        v_max_f32 v{b+1}, 0, v{b+1}
        v_add_f32 v{b+1}, 0x3727c5ac, v{b+1}
        v_rsq_f32 v{RS+i}, v{b+1}
        s_nop 0
        v_mul_f32 v{RZ+i}, 0xbfb8aa3b, v{RS+i}
        """)
    k("v_lshlrev_b32 v10, 4, v2")
    T = 160
    for j in range(3):
        k(f"s_add_u32 s53, s45, {j}\ns_lshr_b32 s54, s53, 1\ns_lshl_b32 s54, s54, 10\ns_and_b32 s53, s53, 1\ns_lshl_b32 s53, s53, 3\ns_add_u32 s54, s54, s53\ns_add_u32 s54, s54, {H1F}")
        for i in range(4):
            a = acc(j, i)
            k(f"s_xor_b32 s55, s42, {i}\ns_lshl_b32 s56, s43, 2\ns_add_u32 s55, s55, s56\ns_mul_i32 s55, s55, {43*1024}\ns_add_u32 s55, s55, s54")
            for e in range(4): k(f"v_fmac_f32 v{a+e}, v{NM+i}, v{CS+4*j+e}")
            for e in range(4): k(f"v_mul_f32 v{T+e}, v{a+e}, v{RZ+i}")
            for e in range(4): k(f"v_exp_f32 v{T+e}, v{T+e}")
            for e in range(4): k(f"v_mul_f32 v{a+e}, v{a+e}, v{RS+i}")
            for e in range(4): k(f"v_add_f32 v{T+e}, 1.0, v{T+e}")
            for e in range(4): k(f"v_rcp_f32 v{T+e}, v{T+e}")
            k("s_nop 0")
            for e in range(4): k(f"v_mul_f32 v{a+e}, v{a+e}, v{T+e}")
            k(f"v_cvt_pk_bf16_f32 v{a}, v{a}, v{a+1}\nv_cvt_pk_bf16_f32 v{a+1}, v{a+2}, v{a+3}")
            k(f"buffer_store_dwordx2 v[{a}:{a+1}], v10, s[24:27], s55 offen")
    finish(k, 3, 36, 2)
    return k

def kernel_g2():
    k = K("g2_kernel", 256, 256, 131072 + 8192, vgpr=128, agpr=176)
    k(f"s_cmp_ge_u32 s2, 256\ns_cbranch_scc1 L_end_{k.name}")
    stamp(k, 0)
    k("s_load_dwordx4 s[28:31], s[0:1], 64\ns_load_dwordx2 s[36:37], s[0:1], 88")
    wgmap(k)
    HP = 131072
    k("""
    v_lshrrev_b32 v7, 3, v2
    v_and_b32 v8, 7, v2
    v_and_b32 v9, 2, v7
    v_lshlrev_b32 v9, 1, v9
    v_xor_b32 v9, v8, v9
    v_lshlrev_b32 v10, 10, v7
    v_lshl_add_u32 v3, v9, 4, v10
    v_lshlrev_b32 v10, 12, v7
    v_lshl_add_u32 v4, v8, 4, v10
    v_lshlrev_b32 v5, 4, v2
    """)
    k("s_mul_i32 s45, s42, 11")
    k("s_lshl_b32 s46, s45, 15\ns_lshl_b32 s47, s44, 7\ns_add_u32 s46, s46, s47")
    k("s_lshl_b32 s47, s42, 15")
    k(f"s_lshl_b32 s48, s44, 18\ns_lshl_b32 s49, s42, 16\ns_add_u32 s48, s48, s49\ns_lshl_b32 s49, s43, 7\ns_add_u32 s48, s48, s49\ns_add_u32 s48, s48, {HT}")
    k(f"s_lshl_b32 s49, s42, 11\ns_add_u32 s49, s49, {HP}")
    for i in range(4):
        k(f"s_xor_b32 s{52+i}, s42, {i}\ns_lshl_b32 s56, s43, 2\ns_add_u32 s{52+i}, s{52+i}, s56\ns_mul_i32 s{52+i}, s{52+i}, 43\ns_add_u32 s{52+i}, s{52+i}, s45\ns_lshl_b32 s{52+i}, s{52+i}, 10\ns_add_u32 s{52+i}, s{52+i}, {H1F}")
    k("s_waitcnt lgkmcnt(0)")
    k.srd(8, 28, 512*1376*2); k.srd(12, 30, 0x200000); k.srd(24, 36, WSZ)
    dma(k, "s_mov_b32 m0, s49", "v4", 24, "s48")
    k("s_add_u32 s48, s48, 32768")
    dma(k, "s_add_u32 m0, s49, 1024", "v4", 24, "s48")
    def issue(ks):
        for q in range(4):
            k(f"s_add_u32 s51, s46, {ks*32768 + q*8192}")
            dma(k, f"s_add_u32 m0, s47, {(ks%8)*4096 + q*1024}", "v3", 8, "s51")
        for i in range(4):
            k(f"s_add_u32 s51, s{52+i}, {ks*1024}")
            k(f"buffer_load_dwordx4 a[{ks*16+4*i}:{ks*16+4*i+3}], v5, s[24:27], s51 offen")
    for ks in range(7): issue(ks)
    k("""
    v_lshrrev_b32 v7, 4, v2
    v_bfe_u32 v8, v2, 2, 2
    v_and_b32 v9, 3, v2
    v_lshl_add_u32 v10, v7, 2, v8
    v_lshlrev_b32 v11, 7, v10
    v_lshl_add_u32 v11, v9, 4, v11
    v_and_b32 v12, 2, v10
    v_lshlrev_b32 v12, 5, v12
    v_xor_b32 v11, v11, v12
    v_add_u32 v11, s47, v11
    v_xor_b32 v12, 64, v11
    """)
    ACC = 32; AF = 96
    acc = lambda jd, i: ACC + (i*4 + jd)*4
    issued = 7
    lskip = k.label()
    for ks in range(11):
        if ks == 10:
            k(f"s_cmp_eq_u32 s42, 3\ns_cbranch_scc1 {lskip}")
        k(f"s_waitcnt vmcnt({8*(issued - ks - 1)})")
        if ks == 0: stamp(k, 1)
        af = AF + (ks % 2)*16
        for jd in range(4):
            for hh in range(2):
                r = af + jd*4 + 2*hh
                k(f"ds_read_b64_tr_b16 v[{r}:{r+1}], v{11+(jd>>1)} offset:{(ks%8)*4096 + hh*2048 + 8*(jd&1)}")
        k("s_waitcnt lgkmcnt(0)")
        if issued < 11:
            issue(issued); issued += 1
        for i in range(4):
            for jd in range(4):
                c = "0" if ks == 0 else f"v[{acc(jd,i)}:{acc(jd,i)+3}]"
                k(f"v_mfma_f32_16x16x32_bf16 v[{acc(jd,i)}:{acc(jd,i)+3}], v[{af+4*jd}:{af+4*jd+3}], a[{ks*16+4*i}:{ks*16+4*i+3}], {c}")
    k(f"{lskip}:")
    stamp(k, 2)
    k("s_waitcnt vmcnt(0)\ns_nop 7\nv_add_u32 v13, s47, v5")
    for i in range(1, 4):
        for jd in range(4):
            k(f"ds_write_b128 v13, v[{acc(jd,i)}:{acc(jd,i)+3}] offset:{((i-1)*4+jd)*1024}")
    k(f"v_lshl_add_u32 v14, v7, 3, v8\nv_lshlrev_b32 v14, 7, v14\nv_lshl_add_u32 v14, v9, 3, v14\ns_lshl_b32 s57, s42, 5\ns_add_u32 s57, s57, {HP}\nv_add_u32 v14, s57, v14")
    k("v_and_b32 v15, 15, v2\nv_lshlrev_b32 v15, 10, v15\nv_lshl_add_u32 v15, v7, 4, v15")
    k("s_lshl_b32 s58, s43, 16\ns_lshl_b32 s59, s42, 14\ns_add_u32 s58, s58, s59\ns_lshl_b32 s59, s44, 7\ns_add_u32 s58, s58, s59\ns_mov_b32 s60, 0xffff0000")
    k("s_waitcnt lgkmcnt(0)\ns_barrier")
    for jd in range(4):
        k(f"ds_read_b64_tr_b16 v[{16+2*jd}:{17+2*jd}], v14 offset:{(32*(jd>>1)+4*(jd&1))*128}")
    for i in range(1, 4):
        k(f"v_xor_b32 v24, {i<<15}, v13")
        for jd in range(4):
            k(f"ds_read_b128 v[{acc(jd,i)}:{acc(jd,i)+3}], v24 offset:{((i-1)*4+jd)*1024}")
    k("s_waitcnt lgkmcnt(0)")
    for jd in range(4):
        for e in range(4):
            a = acc(jd, 0) + e
            hs = 16 + 2*jd + e//2
            k(f"v_lshlrev_b32 v25, 16, v{hs}" if e % 2 == 0 else f"v_and_b32 v25, s60, v{hs}")
            k(f"v_add_f32 v{a}, v{a}, v{acc(jd,1)+e}\nv_add_f32 v26, v{acc(jd,2)+e}, v{acc(jd,3)+e}\nv_add_f32 v{a}, v{a}, v26\nv_add_f32 v{a}, v{a}, v25")
    for jd in range(4):
        a = acc(jd, 0)
        k(f"v_cvt_pk_bf16_f32 v{AF+2*jd}, v{a}, v{a+1}\nv_cvt_pk_bf16_f32 v{AF+2*jd+1}, v{a+2}, v{a+3}")
    k(f"buffer_store_dwordx4 v[{AF}:{AF+3}], v15, s[12:15], s58 offen\nbuffer_store_dwordx4 v[{AF+4}:{AF+7}], v15, s[12:15], s58 offen offset:64")
    finish(k, 3, 36, 3)
    return k

ks = [kernel_pre(), kernel_conv(), kernel_g1(), kernel_g2()]
out = [a for a in sys.argv[1:] if not a.startswith("--")]
emit(ks, ks, out[0] if out else f"cdna_kernels/{NAME}.s")
```

```python
import sys; sys.path.insert(0, "dev")
src6 = open("gen6.py").read()
src4 = open("gen4.py").read()

def rep(s, old, new, cnt=1):
    assert s.count(old) >= 1, old
    return s.replace(old, new) if cnt == 0 else s.replace(old, new, cnt)

f = src4[:src4.rindex('src3 = open(')]
f = rep(f, "def kernel_ffn(kidx=2):", "def kernel_ffn(k, kidx=0):")
f = rep(f, '''    k = K("ffn_kernel", 256, 512, 163840, vgpr=256)\n''', "")
f = rep(f, '''    k(f"s_cmp_ge_u32 s2, 256\\ns_cbranch_scc1 L_end_{k.name}")
    stamp(k, 0)
''', "")
f = rep(f, "        if i in (0, 7) or set == SET: _stamp(k, i)", "        if i in (7,) or set == SET: _stamp(k, i)")
a = f.index('''    k("s_mov_b32 m0, s49\\ns_waitcnt lgkmcnt(0)")''')
b = f.index('''    k("s_mul_i32 s45, s44, 11''')
f = f[:a] + '''    k("s_waitcnt lgkmcnt(0)\\ns_and_b32 s40, s42, 3")
    k.srd(24, 36, WSZ)
    def h_loads():
        k("s_mov_b32 m0, s49\\ns_barrier")
        for q in range(4): k(f"buffer_load_dwordx4 v3, s[24:27], s48 offen offset:{1024*q} sc1 lds")
        k("s_add_u32 m0, s49, 4096\\ns_nop 0")
        for q in range(4): k(f"buffer_load_dwordx4 v3, s[24:27], s47 offen offset:{1024*q} sc1 lds")
''' + f[b:]
f = rep(f, '''    vm = VM(k)
    for _ in range(8): vm.op("h")
    lane_decomp()
    CS = 96''', '''    vm = VM(k)
    lane_decomp()
    CS = 96''')
f = rep(f, '''    vm.wait("h")
    stamp(k, 1)''', '''    h2_wait(k)
    stamp(k, 1, "h2")
    h_loads()
    vm.q = []
    k("s_waitcnt vmcnt(0)")
    stamp(k, 1)
    stamp(k, 2, "h2")''')
f = rep(f, '''    vm = VM(k)
    for _ in range(8): vm.op("h")
    k("s_movk_i32 s50, 2979")''', '''    vm = VM(k)
    k("s_movk_i32 s50, 2979")''')
f = rep(f, "    w1_stage(0); w1_stage(1)\n", "    for s_ in range(4): w1_stage(s_)\n")
f = rep(f, '''    vm.wait(("w1", 0))
    k("s_barrier")     # B(0)
    w2s''', '''    h_loads()
    for _ in range(8): vm.op("h")
    vm.wait("h")
    k("s_barrier")     # B(0)
    w2s''')
f = rep(f, "        if s + 1 < 8: w1_stage(s + 1)\n", "        if 4 <= s + 1 < 8: w1_stage(s + 1)\n")
f = rep(f, '''k(f"s_lshl_b32 s53, s43, 8\\ns_add_u32 s53, s53, {F3}\\nbuffer_load_dword v28, v27, s[24:27], s53 offen sc1\\ns_setprio 1"); vm.op("cs")''',
          '''k(f"s_lshl_b32 s53, s43, 9\\ns_add_u32 s53, s53, {F3}\\nv_lshlrev_b32 v28, 2, v2\\nbuffer_load_dword v28, v28, s[24:27], s53 offen sc1\\ns_setprio 1"); vm.op("cs")''')
f = rep(f, '''k(f"s_lshl_b32 s53, s43, 8\\ns_add_u32 s53, s53, {F3}\\ns_lshl_b32 s54, s44, 4\\ns_add_u32 s53, s53, s54\\ns_lshl_b32 s54, s40, 2\\ns_add_u32 s53, s53, s54\\nv_mov_b32 v26, 1")''',
          '''k(f"s_lshl_b32 s53, s43, 9\\ns_add_u32 s53, s53, {F3}\\ns_lshl_b32 s54, s44, 5\\ns_add_u32 s53, s53, s54\\ns_lshl_b32 s54, s40, 3\\ns_add_u32 s53, s53, s54\\nv_mov_b32 v28, s96\\nv_mov_b32 v29, s97")''')
f = rep(f, '''buffer_store_dword v26, v27, s[24:27], s53 offen\\nbuffer_store_dword v26, v27, s[24:27], s53 offen offset:128 sc1''',
          '''buffer_store_dwordx2 v[28:29], v27, s[24:27], s53 offen\\nbuffer_store_dwordx2 v[28:29], v27, s[24:27], s53 offen offset:256 sc1''')
f = rep(f, '''k(f"s_lshl_b32 s52, s43, 8\\ns_add_u32 s52, s52, {F3}\\nv_and_b32 v31, 31, v2\\nv_lshlrev_b32 v31, 2, v31")''',
          '''k(f"s_lshl_b32 s52, s43, 9\\ns_add_u32 s52, s52, {F3}\\nv_and_b32 v31, 31, v2\\nv_lshlrev_b32 v31, 3, v31")''')
f = rep(f, '''k("buffer_load_dword v28, v31, s[24:27], s52 offen sc1\\nv_mov_b32 v29, 0")''', '''k("buffer_load_dwordx2 v[12:13], v31, s[24:27], s52 offen sc1\\ns_mov_b64 s[68:69], 0")''')
f = rep(f, '''        v_or_b32 v29, v29, v28
        v_cmp_ne_u32 s[68:69], 1, v29
        s_add_u32 s67, s67, 1
        s_cmp_eq_u64 s[68:69], 0
        s_cbranch_scc1 {ok}
        s_and_b32 s70, s67, 3
        s_cmp_eq_u32 s70, 3
        s_cselect_b32 s70, 128, 0
        s_add_u32 s70, s70, s52
        buffer_load_dword v28, v31, s[24:27], s70 offen sc1''', '''        v_cmp_eq_u64 vcc, s[96:97], v[12:13]
        s_add_u32 s67, s67, 1
        s_or_b64 s[68:69], s[68:69], vcc
        s_cmp_eq_u64 s[68:69], -1
        s_cbranch_scc1 {ok}
        s_and_b32 s70, s67, 15
        s_cmp_eq_u32 s70, 15
        s_cselect_b32 s70, 256, 0
        s_add_u32 s70, s70, s52
        buffer_load_dwordx2 v[12:13], v31, s[24:27], s70 offen sc1''')
exec(f)

g = src6[src6.index("FL = 0x440000"):src6.rindex('HSF = ')]
g = rep(g, '''    k = K("k1_kernel", 256, 512, EX + 32768, vgpr=200)''', '''    k = K(KNAME, 256, 512, 163840, vgpr=256)''')
g = rep(g, "    def stamp(k, i): _stamp(k, i)", "    def stamp(k, i):\n        if i == 0 or SET == 'k1': _stamp(k, i)")
g = rep(g, '''        v_mov_b32 v18, s54
        v_mov_b32 v19, s55
''', '''        v_mov_b32 v18, s54
        v_mov_b32 v19, s55
        s_mov_b64 s[96:97], s[54:55]
''')
a = g.index('''    k(f"s_lshl_b32 s3, s2, 5\\ns_add_u32 s3, s3, {F3}''')
b = g.index('''    k("s_waitcnt lgkmcnt(0)")
    for i in range(4): k(f"ds_read_b128 v[{32+4*i}:{35+4*i}], v13 offset:{16*i}")''')
g = g[:a] + g[b:]
g = rep(g, '''    k("s_waitcnt lgkmcnt(0)\\ns_barrier")
    k("s_branch L_k1_fin")''', '''    k("s_waitcnt lgkmcnt(0)\\ns_barrier\\ns_setprio 0\\ns_barrier")
    k("s_branch L_k1_fin")''')
g = rep(g, '''    k("L_k1_fin:")
    finish(k, 7, 38, kidx)''', '''    k(f"""
    s_barrier
    s_lshl_b32 s50, s40, 5
    s_add_u32 s50, s50, s41
    s_lshl_b32 s50, s50, 2
    s_add_u32 s50, s50, s43
    s_lshl_b32 s50, s50, 3
    s_add_u32 s50, s50, {FL + 0x20000}
    s_add_u32 s51, s50, 0x8000
    v_mov_b32 v20, s96
    v_mov_b32 v21, s97
    s_mov_b64 exec, 1
    s_waitcnt vmcnt(0)
    buffer_store_dwordx2 v[20:21], v27, s[24:27], s50 offen
    buffer_store_dwordx2 v[20:21], v27, s[24:27], s51 offen sc1
    s_mov_b64 exec, -1
    """)
    k("L_k1_fin:")''')
HSF = "sc1"
KNAME = NAME + "_kernel"
exec(g)

def h2_wait(k):
    l_agg, l_poll, l_done, lp, ok, lp2 = [k.label() for _ in range(6)]
    k(f"""
    s_cmp_eq_u32 s42, 0
    s_cbranch_scc1 {l_poll}
    s_cmp_lg_u32 s42, 1
    s_cbranch_scc1 {l_done}
    s_cmp_ge_u32 s2, 8
    s_cbranch_scc1 {l_done}
    s_lshl_b32 s62, s2, 10
    s_add_u32 s62, s62, {FL + 0x20000}
    s_mov_b32 s3, 0
    s_mov_b64 s[68:69], 0
    s_mov_b64 s[70:71], 0
    {lp}:
    buffer_load_dwordx4 v[220:223], v24, s[24:27], s62 offen sc1
    s_add_u32 s3, s3, 1
    s_waitcnt vmcnt(0)
    v_cmp_eq_u64 vcc, s[96:97], v[220:221]
    s_or_b64 s[68:69], s[68:69], vcc
    v_cmp_eq_u64 vcc, s[96:97], v[222:223]
    s_or_b64 s[70:71], s[70:71], vcc
    s_and_b64 s[72:73], s[68:69], s[70:71]
    s_cmp_eq_u64 s[72:73], -1
    s_cbranch_scc1 {ok}
    s_cmp_lt_u32 s3, {FBK}
    s_cbranch_scc1 {lp}
    s_xor_b32 s62, s62, 0x8000
    s_cmp_lt_u32 s3, {SPIN}
    s_cbranch_scc1 {lp}
    {ok}:
    v_mov_b32 v220, s96
    v_mov_b32 v221, s97
    v_lshlrev_b32 v222, 7, v2
    s_lshl_b32 s62, s2, 3
    s_add_u32 s62, s62, {FL + 0x30000}
    s_mov_b64 exec, 0xff
    buffer_store_dwordx2 v[220:221], v222, s[24:27], s62 offen sc1
    s_mov_b64 exec, -1
    s_branch {l_done}
    {l_poll}:
    s_and_b32 s62, s2, 7
    s_lshl_b32 s62, s62, 7
    s_add_u32 s62, s62, {FL + 0x30000}
    v_and_b32 v222, 7, v2
    v_lshlrev_b32 v222, 3, v222
    s_mov_b32 s3, 0
    {lp2}:
    buffer_load_dwordx2 v[220:221], v222, s[24:27], s62 offen sc1
    s_add_u32 s3, s3, 1
    s_waitcnt vmcnt(0)
    v_cmp_eq_u64 vcc, s[96:97], v[220:221]
    s_cmp_eq_u64 vcc, -1
    s_cbranch_scc1 {l_done}
    s_cmp_lt_u32 s3, {SPIN}
    s_cbranch_scc1 {lp2}
    {l_done}:
    """)

if __name__ == "__main__":
    k = kernel_k1()
    kernel_ffn(k)
    out = [a for a in sys.argv[1:] if not a.startswith("--")]
    path = out[0] if out else f"cdna_kernels/{NAME}.s"
    emit([k], [k], path)
    if "--single" in sys.argv:
        t = open(path).read().replace(f"; @launch kernel={k.name} grid", "; @launch grid")
        open(path, "w").write(t)
```
